```python
import torch

def _softmax(x, axis=-1):
    return torch.softmax(x, dim=axis)

def _gelu(x):
    return torch.nn.functional.gelu(x, approximate='tanh')

def _silu(x):
    return torch.nn.functional.silu(x)

def _sigmoid(x):
    return torch.sigmoid(x)

def _layernorm(x, axis=-1, eps=1e-05):
    m = x.mean(dim=axis, keepdim=True)
    v = x.var(dim=axis, keepdim=True, unbiased=False)
    return (x - m) / torch.sqrt(v + eps)

def _scatter_add(tgt, idx, src, axis=0):
    return tgt.clone().index_add_(axis, idx, src)

def _segment_sum(src, seg, n):
    out = torch.zeros((n,) + src.shape[1:], dtype=src.dtype)
    return out.index_add_(0, seg, src)

def _pad(x, pw):
    flat = tuple((v for pair in reversed(pw) for v in pair))
    return torch.nn.functional.pad(x, flat)
kernel_name = 'adaLN_cond__compressed_kv_cla__glu_gated_geglu__prompt'

def setup_inputs():

    _w = lambda a: (lambda t: t.to(torch.bfloat16) if t.is_floating_point() else t)(torch.as_tensor(a))

    def _A_setup():
        B, H, Sq, Sk, D, M = (1, 32, 2048, 2048, 128, 640)
        Dc = 4 * D
        return {'x': _w((lambda *s: torch.randn(*s, dtype=torch.bfloat16) * 0.1)(B, Sq, M)), 'c_kv': _w((lambda *s: torch.randn(*s, dtype=torch.bfloat16) * 3.2)(B, Sk, Dc)), 'w_q': _w((lambda *s: torch.randn(*s, dtype=torch.bfloat16) * 0.4)(M, H, D) * M ** (-0.5)), 'w_uk': _w((lambda *s: torch.randn(*s, dtype=torch.bfloat16) * 0.4)(Dc, H, D) * Dc ** (-0.5)), 'w_uv': _w((lambda *s: torch.randn(*s, dtype=torch.bfloat16) * 3.2)(Dc, H, D) * Dc ** (-0.5)), 'w_o': _w((lambda *s: torch.randn(*s, dtype=torch.bfloat16) * 3.2)(H, D, M) * (H * D) ** (-0.5))}
    _A_in = _A_setup()

    def _B_setup():
        B, S, Dm, Df = (1, 2048, 640, 1728)
        return {'x': _w((lambda *s: torch.randn(*s, dtype=torch.bfloat16) * 0.1)(B, S, Dm)), 'w_gate': _w((lambda *s: torch.randn(*s, dtype=torch.bfloat16) * 3.2)(Dm, Df) * Dm ** (-0.5)), 'w_up': _w((lambda *s: torch.randn(*s, dtype=torch.bfloat16) * 3.2)(Dm, Df) * Dm ** (-0.5)), 'w_down': _w((lambda *s: torch.randn(*s, dtype=torch.bfloat16) * 3.2)(Df, Dm) * Df ** (-0.5))}
    _B_in = _B_setup()
    return {'A_x': _A_in['x'], 'A_c_kv': _A_in['c_kv'], 'A_w_q': _A_in['w_q'], 'A_w_uk': _A_in['w_uk'], 'A_w_uv': _A_in['w_uv'], 'A_w_o': _A_in['w_o'], 'B_x': _B_in['x'], 'B_w_gate': _B_in['w_gate'], 'B_w_up': _B_in['w_up'], 'B_w_down': _B_in['w_down'], 'c': _w((lambda *s: torch.randn(*s, dtype=torch.bfloat16) * 0.4)(1, 640) * 8.0), 'w_mod': _w((lambda *s: torch.randn(*s, dtype=torch.bfloat16) * 0.4)(640, 6 * 640) * 640 ** (-0.5) * 8.0)}

def reference(A_x, A_c_kv, A_w_q, A_w_uk, A_w_uv, A_w_o, B_x, B_w_gate, B_w_up, B_w_down, c, w_mod):

    def _A_ref(x, c_kv, w_q, w_uk, w_uv, w_o):
        B, Sq, M = (x.shape[0], x.shape[1], x.shape[2])
        Sk = c_kv.shape[1]
        H, D = (w_q.shape[1], w_q.shape[2])
        q = torch.einsum('bqm,mhd->bhqd', x, w_q)
        k = torch.einsum('bkc,chd->bhkd', c_kv, w_uk)
        v = torch.einsum('bkc,chd->bhkd', c_kv, w_uv)
        scores = torch.einsum('bhqd,bhkd->bhqk', q, k) * D ** (-0.5)
        off = Sk - Sq
        qi = torch.arange(Sq)[:, None]
        kj = torch.arange(Sk)[None, :]
        cmask = kj <= qi + off
        scores = torch.where(cmask[None, None], scores, -1000000000.0)
        p = _softmax(scores, axis=-1)
        ctx = torch.einsum('bhqk,bhkd->bhqd', p, v)
        return torch.einsum('bhqd,hdm->bqm', ctx, w_o)

    def _B_ref(x, w_gate, w_up, w_down):
        g = torch.einsum('bsd,df->bsf', x, w_gate)
        u = torch.einsum('bsd,df->bsf', x, w_up)
        h = _gelu(g) * u
        return torch.einsum('bsf,fd->bsd', h, w_down)
    x = A_x
    mod = (_silu(c) @ w_mod).reshape(c.shape[0], 6, 1, -1)
    sa, ca, ga, sb, cb, gb = (mod[:, 0].clone(), mod[:, 1].clone(), mod[:, 2].clone(), mod[:, 3].clone(), mod[:, 4].clone(), mod[:, 5].clone())
    h = _layernorm(x, axis=-1) * (1 + ca) + sa
    x = x + ga * _A_ref(h, A_c_kv, A_w_q, A_w_uk, A_w_uv, A_w_o)
    h = _layernorm(x, axis=-1) * (1 + cb) + sb
    x = x + gb * _B_ref(h, B_w_gate, B_w_up, B_w_down)
    return x
```

```python
import re

TRANS = ("v_exp_f32", "v_log_f32", "v_rcp_f32", "v_rsq_f32", "v_sqrt_f32", "v_sin_f32", "v_cos_f32")
_reg1 = re.compile(r"^([vas])(\d+)$")
_regn = re.compile(r"^([vas])\[(\d+):(\d+)\]$")


def regs_of(tok):
    tok = tok.strip()
    if tok.startswith("-"):
        tok = tok[1:]
    if tok.startswith("abs(") and tok.endswith(")"):
        tok = tok[4:-1]
    if tok.startswith("|") and tok.endswith("|"):
        tok = tok[1:-1]
    m = _reg1.match(tok)
    if m:
        return [m.group(1) + m.group(2)]
    m = _regn.match(tok)
    if m:
        return [m.group(1) + str(i) for i in range(int(m.group(2)), int(m.group(3)) + 1)]
    if tok in ("vcc", "exec", "m0", "scc"):
        return [tok]
    if tok in ("vcc_lo", "vcc_hi"):
        return ["vcc"]
    if tok in ("exec_lo", "exec_hi"):
        return ["exec"]
    return []


def split_ops(s):
    out, depth, cur = [], 0, ""
    for ch in s:
        if ch in "[(":
            depth += 1
        if ch in "])":
            depth -= 1
        if ch == "," and depth == 0:
            out.append(cur.strip())
            cur = ""
        else:
            cur += ch
    if cur.strip():
        out.append(cur.strip())
    return out


class Ins:
    __slots__ = ("text", "op", "kind", "rd", "wr", "tag", "srcC", "srcAB", "passes", "dpp", "wide", "keep", "nopn", "sdata")

    def __init__(self, text, tag=None):
        self.text = text
        self.tag = tag
        self.rd, self.wr = set(), set()
        self.srcC, self.srcAB = [], []
        self.passes = 0
        self.dpp = False
        self.wide = False
        self.keep = None
        self.nopn = 0
        self.sdata = []
        t = text.split(";")[0].strip()
        if t.endswith(":") or t.startswith(".") or t == "":
            self.op, self.kind = t, "label"
            return
        parts = t.split(None, 1)
        op = parts[0]
        rest = parts[1] if len(parts) > 1 else ""
        self.op = op
        if op == "WAITVM":
            _, tg, kp = t.split()
            self.kind, self.tag, self.keep = "waitvm", tg, int(kp)
            return
        ops = split_ops(rest)
        mods = ""
        if ops:
            lastparts = ops[-1].split(None, 1)
            if len(lastparts) > 1 and not ops[-1].startswith("hwreg"):
                ops[-1] = lastparts[0]
                mods = lastparts[1]
        R = lambda i: regs_of(ops[i]) if i < len(ops) else []
        if op.startswith("v_mfma"):
            self.kind = "mfma"
            self.passes = 8 if "32x32x16" in op else 4
            self.wr.update(R(0))
            self.srcAB = R(1) + R(2)
            self.srcC = R(3)
            self.rd.update(self.srcAB + self.srcC)
        elif op.startswith("v_"):
            base = op.replace("_e32", "").replace("_e64", "").replace("_dpp", "").replace("_sdwa", "")
            self.kind = "trans" if base in TRANS else "valu"
            self.dpp = ("row_" in mods) or ("quad_perm" in mods) or op.endswith("_dpp")
            if base.startswith("v_permlane"):
                self.wr.update(R(0) + R(1))
                self.rd.update(R(0) + R(1))
            elif base.startswith("v_cmp"):
                self.wr.update(R(0))
                for i in range(1, len(ops)):
                    self.rd.update(R(i))
            elif base in ("v_add_co_u32", "v_sub_co_u32", "v_addc_co_u32"):
                self.wr.update(R(0) + R(1))
                for i in range(2, len(ops)):
                    self.rd.update(R(i))
            else:
                self.wr.update(R(0))
                for i in range(1, len(ops)):
                    self.rd.update(R(i))
                if base in ("v_fmac_f32", "v_writelane_b32") or self.dpp:
                    self.rd.update(R(0))
        elif op.startswith("ds_"):
            if op.startswith("ds_read") or op.startswith("ds_bpermute") or op.startswith("ds_swizzle") or "rtn" in op:
                self.kind = "ds_r"
                self.wr.update(R(0))
                for i in range(1, len(ops)):
                    self.rd.update(R(i))
            else:
                self.kind = "ds_w"
                for i in range(len(ops)):
                    self.rd.update(R(i))
        elif op.startswith("buffer_") or op.startswith("global_"):
            if op in ("buffer_inv", "buffer_wbl2"):
                self.kind = "vm_st"
            elif "load" in op and (" lds" in " " + mods or "load_lds" in op):
                self.kind = "vm_dma"
                for i in range(len(ops)):
                    self.rd.update(R(i))
                self.rd.add("m0")
            elif "load" in op:
                self.kind = "vm_ld"
                self.wr.update(R(0))
                for i in range(1, len(ops)):
                    self.rd.update(R(i))
            elif "atomic" in op and "sc0" in mods:
                self.kind = "vm_ld"
                self.wr.update(R(0))
                for i in range(len(ops)):
                    self.rd.update(R(i))
            else:
                self.kind = "vm_st"
                for i in range(len(ops)):
                    self.rd.update(R(i))
                self.wide = op.endswith("x4") or op.endswith("x3")
                self.sdata = R(0) if op.startswith("buffer_") else R(1)
        elif op == "s_waitcnt":
            self.kind = "wait"
        elif op == "s_barrier":
            self.kind = "barrier"
        elif op == "s_nop":
            self.kind = "nop"
            self.nopn = int(ops[0], 0) + 1
        elif op.startswith("s_cbranch") or op in ("s_branch", "s_endpgm", "s_setpc_b64", "s_call_b64"):
            self.kind = "branch"
            if "vcc" in op:
                self.rd.add("vcc")
        elif op.startswith("s_load") or op.startswith("s_memtime") or op.startswith("s_memrealtime") or op.startswith("s_buffer_load"):
            self.kind = "smem"
            self.wr.update(R(0))
            for i in range(1, len(ops)):
                self.rd.update(R(i))
        elif op.startswith("s_"):
            self.kind = "salu"
            if op.startswith("s_cmp") or op in ("s_setprio", "s_sleep", "s_bitcmp1_b32", "s_bitcmp0_b32"):
                for i in range(len(ops)):
                    self.rd.update(R(i))
            else:
                self.wr.update(R(0))
                for i in range(1, len(ops)):
                    self.rd.update(R(i))
                if "saveexec" in op:
                    self.wr.add("exec")
        else:
            raise ValueError("unknown instruction: " + text)


def parse_wait(text):
    vm = re.search(r"vmcnt\((\d+)\)", text)
    lg = re.search(r"lgkmcnt\((\d+)\)", text)
    return (int(vm.group(1)) if vm else None, int(lg.group(1)) if lg else None)


class Kernel:
    def __init__(self, name, vgpr, agpr=0, sgpr=96):
        self.name = name
        self.vgpr, self.agpr, self.sgpr = vgpr, agpr, sgpr
        self.blocks = {}
        self.order = []
        self.cur = None
        self.traces = []
        self.block("entry", label=False)

    def lab(self, n):
        return f"{self.name}_{n}"

    def block(self, name, label=True, align=None):
        assert name not in self.blocks, name
        self.blocks[name] = []
        self.order.append(name)
        self.cur = self.blocks[name]
        if align:
            self.cur.append(Ins(f".p2align {align}"))
        if label:
            self.cur.append(Ins(self.lab(name) + ":"))

    def __call__(self, text, tag=None):
        for l in text.split("\n"):
            l = l.strip()
            if l:
                self.cur.append(Ins(l, tag))

    def trace(self, names):
        self.traces.append(list(names))

    def _waits(self):
        need = {}
        for tr in self.traces:
            vmq, dsq = [], []
            smem = set()
            for b in tr:
                for i, ins in enumerate(self.blocks[b]):
                    key = (b, i)
                    k = ins.kind
                    if k == "label":
                        continue
                    vmN = lgN = None
                    if k == "waitvm":
                        idx = [j for j, o in enumerate(vmq) if o.tag == ins.tag]
                        idx = idx[: max(0, len(idx) - ins.keep)]
                        if idx:
                            vmN = len(vmq) - 1 - idx[-1]
                    elif k != "wait":
                        touch = ins.rd | ins.wr
                        for j in range(len(vmq) - 1, -1, -1):
                            if vmq[j].wr & touch:
                                vmN = len(vmq) - 1 - j
                                break
                        for j in range(len(dsq) - 1, -1, -1):
                            if dsq[j].wr & touch:
                                lgN = len(dsq) - 1 - j
                                break
                        if smem & touch:
                            raise RuntimeError(f"{self.name}: smem result used without wait: {ins.text}")
                        if lgN is not None and smem:
                            lgN = 0
                    if vmN is not None:
                        vmN = min(vmN, 62)
                    if lgN is not None:
                        lgN = min(lgN, 14)
                    cur = need.get(key, [None, None])
                    if vmN is not None:
                        cur[0] = vmN if cur[0] is None else min(cur[0], vmN)
                    if lgN is not None:
                        cur[1] = lgN if cur[1] is None else min(cur[1], lgN)
                    if cur != [None, None]:
                        need[key] = cur
                    wv, wl = cur
                    if k == "wait":
                        wv, wl = parse_wait(ins.text)
                    if wv is not None and wv < 63:
                        vmq = vmq[len(vmq) - wv:] if wv < len(vmq) else vmq
                        if wv == 0:
                            vmq = []
                    if wl is not None and wl < 15:
                        if smem and wl != 0:
                            pass
                        else:
                            dsq = dsq[len(dsq) - wl:] if wl < len(dsq) else dsq
                            if wl == 0:
                                dsq = []
                                smem = set()
                    if k in ("vm_ld", "vm_dma", "vm_st"):
                        vmq.append(ins)
                        if len(vmq) > 63:
                            raise RuntimeError(f"{self.name}: more than 63 vmem ops in flight at {b}:{i} {ins.text}")
                    elif k in ("ds_r", "ds_w"):
                        dsq.append(ins)
                    elif k == "smem":
                        smem |= ins.wr
        for b in self.order:
            out = []
            for i, ins in enumerate(self.blocks[b]):
                w = need.get((b, i))
                if w:
                    t = "s_waitcnt"
                    if w[0] is not None:
                        t += f" vmcnt({min(w[0], 62)})"
                    if w[1] is not None:
                        t += f" lgkmcnt({min(w[1], 14)})"
                    out.append(Ins(t))
                if ins.kind != "waitvm":
                    out.append(ins)
            self.blocks[b] = out

    @staticmethod
    def _hazard(p, c):
        n = 0
        pv = p.kind in ("valu", "trans")
        cv = c.kind in ("valu", "trans")
        cmem = c.kind in ("ds_r", "ds_w", "vm_ld", "vm_dma", "vm_st")
        if pv:
            vw = {r for r in p.wr if r[0] in "va" and r != "vcc"}
            sw = p.wr - vw
            if c.kind == "mfma" and vw & c.rd:
                n = max(n, 2)
            if p.kind == "trans" and cv and vw & c.rd:
                n = max(n, 1)
            if cv and vw & c.rd:
                if c.op.startswith("v_readlane") or c.op.startswith("v_readfirstlane"):
                    n = max(n, 1)
                if c.dpp or c.op.startswith("v_permlane"):
                    n = max(n, 2)
            if sw:
                if cv and sw & c.rd:
                    n = max(n, 4 if ("lane" in c.op and "permlane" not in c.op) else 2)
                if cmem and sw & c.rd:
                    n = max(n, 5)
                if c.kind in ("salu", "branch", "smem") and sw & c.rd:
                    n = max(n, 1)
        if p.kind == "mfma":
            full = {4: 8, 8: 12}[p.passes]
            if c.kind == "mfma":
                if p.wr & set(c.srcAB):
                    n = max(n, full)
                if p.wr & set(c.srcC):
                    if not (set(c.srcC) == p.wr and c.passes == p.passes):
                        n = max(n, full - 2)
                elif p.wr & c.wr:
                    n = max(n, full - 2)
            elif (cv or cmem) and p.wr & (c.rd | c.wr):
                n = max(n, full)
            if cv and set(p.srcC) & c.wr:
                n = max(n, {4: 3, 8: 7}[p.passes])
        if p.kind == "salu" and "m0" in p.wr and ("m0" in c.rd) and (c.kind == "vm_dma" or cv):
            n = max(n, 1)
        if p.kind == "vm_st" and p.wide and set(p.sdata) & c.wr:
            n = max(n, 2)
        return n

    def _nops(self):
        need = {}
        for tr in self.traces:
            hist = []
            for b in tr:
                for i, ins in enumerate(self.blocks[b]):
                    if ins.kind == "label":
                        continue
                    key = (b, i)
                    pad = need.get(key, 0)
                    for p, d in hist:
                        h = self._hazard(p, ins)
                        if h > d + pad:
                            pad = h - d
                    if pad:
                        need[key] = pad
                    adv = pad + (ins.nopn if ins.kind == "nop" else 1)
                    hist = [(p, d + adv) for p, d in hist if d + adv < 13]
                    if ins.kind in ("valu", "trans", "mfma", "salu", "vm_st"):
                        hist.append((ins, 0))
        cnt = 0
        for b in self.order:
            out = []
            for i, ins in enumerate(self.blocks[b]):
                p = need.get((b, i), 0)
                if p:
                    out.append(Ins(f"s_nop {p - 1}"))
                    cnt += 1
                out.append(ins)
            self.blocks[b] = out
        return cnt

    def finish(self):
        seen = set(b for t in self.traces for b in t)
        for b in self.order:
            if b not in seen:
                raise RuntimeError(f"{self.name}: block {b} is on no trace")
        self._waits()
        self.nnops = self._nops()
        for b in self.order:
            for ins in self.blocks[b]:
                for r in ins.rd | ins.wr:
                    if r[0] == "v" and r != "vcc":
                        assert int(r[1:]) < self.vgpr, (self.name, ins.text)
                    elif r[0] == "a":
                        assert int(r[1:]) < self.agpr, (self.name, ins.text)
                    elif r[0] == "s" and r != "scc":
                        assert int(r[1:]) < self.sgpr, (self.name, ins.text)

    def text(self):
        t = f".globl {self.name}\n.p2align 8\n.type {self.name},@function\n{self.name}:\n"
        for b in self.order:
            for ins in self.blocks[b]:
                t += shorten(ins.text) + "\n"
        return t

    def desc(self):
        acc = (self.vgpr + 3) // 4 * 4
        nfv = acc + self.agpr if self.agpr else self.vgpr
        return f""".p2align 6
.amdhsa_kernel {self.name}
  .amdhsa_next_free_vgpr {nfv}
  .amdhsa_next_free_sgpr {self.sgpr}
  .amdhsa_accum_offset {acc}
  .amdhsa_group_segment_fixed_size 0
  .amdhsa_kernarg_size 120
  .amdhsa_user_sgpr_count 2
  .amdhsa_user_sgpr_kernarg_segment_ptr 1
  .amdhsa_system_sgpr_workgroup_id_x 1
  .amdhsa_float_denorm_mode_32 3
.end_amdhsa_kernel
"""


MACROS = {"v_mfma_f32_16x16x32_bf16": ("mf", 4), "v_accvgpr_read_b32": ("ard", 2), "v_accvgpr_write_b32": ("awr", 2),
          "v_cvt_pk_bf16_f32": ("cvt", 3)}


def shorten(t):
    p = t.split(None, 1)
    if p and p[0] in MACROS:
        return MACROS[p[0]][0] + " " + p[1].replace(", ", ",")
    return t.replace(" offset:0 ", " ").replace(", ", ",")


def macro_defs():
    o = ""
    for full, (sh, n) in MACROS.items():
        args = "abcd"[:n]
        o += f".macro {sh} " + ", ".join(args) + f"\n{full} " + ", ".join("\\" + a for a in args) + "\n.endm\n"
    return o


def vr(b, n=4, k="v"):
    return f"{k}{b}" if n == 1 else f"{k}[{b}:{b + n - 1}]"


def ar(b, n=4):
    return vr(b, n, "a")


def sr(b, n=4):
    return vr(b, n, "s")


def weave(k, mfmas, slots):
    for i, m in enumerate(mfmas):
        k(m)
        for f in slots.get(i, []):
            if isinstance(f, tuple):
                k(f[0], tag=f[1])
            else:
                k(f)
```

```python
from asmlib import *
from layout import *
import struct
def f2u(x): return "0x%08x" % struct.unpack("<I", struct.pack("<f", x))[0]
LOG2E = 1.4426950408889634

def srd(k, s, base_pair, off, size):
    if off:
        k(f"s_add_u32 s{s}, s{base_pair}, {off}")
        k(f"s_addc_u32 s{s+1}, s{base_pair+1}, 0")
    else:
        k(f"s_mov_b32 s{s}, s{base_pair}")
        k(f"s_mov_b32 s{s+1}, s{base_pair+1}")
    k(f"s_mov_b32 s{s+2}, {size}")
    k(f"s_mov_b32 s{s+3}, 0x20000")

def ldarg(k, s, off):
    k(f"s_load_dwordx2 s[{s}:{s+1}], s[0:1], {off}")

def divc(k, dst, src, c, tmp):
    m = -(-(1 << 20) // c)
    k(f"v_mul_u32_u24 v{dst}, {m}, v{src}")
    k(f"v_lshrrev_b32 v{dst}, 20, v{dst}")
def divc_ok(c, maxv):
    m = -(-(1 << 20) // c)
    assert m * maxv < (1 << 32) and m < (1 << 24)
    assert all((x * m) >> 20 == x // c for x in range(maxv + 1)), (c, maxv)
```

```python
def _al(x): return (x + 0xffff) // 0x10000 * 0x10000
MODP = 0;                    MODP_SZ = 4*3840*4
MODF = _al(MODP+MODP_SZ);    MODF_SZ = 3840*4
HF   = _al(MODF+MODF_SZ);    HF_SZ = 2048*640*2
KVF  = _al(HF+HF_SZ);        KVF_SZ = 2048*8192*2
CF   = _al(KVF+KVF_SZ+65536); CF_SZ = 2048*4096*2
WOF  = _al(CF+CF_SZ);        WOF_SZ = 4096*640*2
WGF  = _al(WOF+WOF_SZ);      WGF_SZ = 640*3456*2
WDF  = _al(WGF+WGF_SZ);      WDF_SZ = 1728*640*2
X1F  = _al(WDF+WDF_SZ);      X1F_SZ = 2048*640*2
H2F  = _al(X1F+X1F_SZ);      H2F_SZ = 2048*640*2
ACTF = _al(H2F+H2F_SZ);      ACTF_SZ = 2048*1728*2
WS_END = _al(ACTF+ACTF_SZ)
A_X, A_CKV, A_WQ, A_WUK, A_WUV, A_WO, A_BX, A_WG, A_WU, A_WD, A_C, A_WMOD, A_OUT, A_DBG, A_WS = [8*i for i in range(15)]
QSCALE = 128**-0.5 * 1.4426950408889634
```

```python
import sys
from gen_common import *
import importlib
HEAD = open("adaLN_cond__compressed_kv_cla__glu_gated_geglu__prompt.s.ref").read().split("; Override launch")[0]
def build(names, out):
    ks = []
    for n in names:
        mod, fn = n.split(".")
        ks.append(getattr(importlib.import_module(mod), fn)())
    t = HEAD
    for k, (nm, g, b, lds) in ks:
        t += f"; @launch kernel={nm} grid=({g},1,1) block=({b},1,1) lds={lds}\n"
    t += '.amdgcn_target "amdgcn-amd-amdhsa--gfx950"\n.text\n' + macro_defs()
    for k, _ in ks: t += k.text()
    t += '.section .rodata,"a"\n'
    for k, _ in ks: t += k.desc()
    open(out, "w").write(t)
    for k, _ in ks:
        n = sum(1 for b in k.order for i in k.blocks[b] if i.kind != "label")
        print(k.name, "instrs", n, "nops", k.nnops)
ALL = ["gen_pre.pre_kernel"]
if __name__ == "__main__":
    import klist
    build(klist.ALL, sys.argv[1] if len(sys.argv) > 1 else "full.s")
```

```python
import sys
def kern(name, body, vgpr=64, sgpr=48):
    return f""".globl {name}
.p2align 8
.type {name},@function
{name}:
{body}
s_endpgm
""", f""".amdhsa_kernel {name}
  .amdhsa_next_free_vgpr {vgpr}
  .amdhsa_next_free_sgpr {sgpr}
  .amdhsa_accum_offset {min(256,(vgpr+3)//4*4)}
  .amdhsa_group_segment_fixed_size 0
  .amdhsa_kernarg_size 32
  .amdhsa_user_sgpr_count 2
  .amdhsa_user_sgpr_kernarg_segment_ptr 1
  .amdhsa_system_sgpr_workgroup_id_x 1
.end_amdhsa_kernel
"""
def wr(flags, nstores):
    b = f"""
s_load_dwordx2 s[4:5], s[0:1], 24
s_waitcnt lgkmcnt(0)
s_mov_b32 s8, s4
s_mov_b32 s9, s5
s_mov_b32 s10, 0x10000000
s_mov_b32 s11, 0x20000
s_mul_i32 s3, s2, {nstores*4096}
v_lshlrev_b32 v1, 4, v0
v_add_u32 v1, s3, v1
v_mov_b32 v4, v0
v_mov_b32 v5, v0
v_mov_b32 v6, v0
v_mov_b32 v7, v0
s_mov_b32 s12, 0
"""
    for i in range(nstores):
        b += f"buffer_store_dwordx4 v[4:7], v1, s[8:11], s12 offen {flags}\ns_add_u32 s12, s12, 4096\n"
    return b
def gen(launch, kerns):
    t = "".join(f"; @launch kernel={k} grid=({g},1,1) block=({bl},1,1) lds={lds}\n" for k,g,bl,lds in launch)
    t += '.amdgcn_target "amdgcn-amd-amdhsa--gfx950"\n.text\n'
    t += "".join(k[0] for k in kerns)
    t += '.section .rodata,"a"\n' + "".join(".p2align 6\n"+k[1] for k in kerns)
    return t
if __name__ == "__main__":
    empty = kern("empty_kernel", "s_nop 0")
    for nm, fl in (("plain",""),("sc1","sc1"),("nt","nt"),("sc01","sc0 sc1")):
        k = kern("w_kernel", wr(fl, 32))
        open(f"mb1_{nm}.s","w").write(gen([("w_kernel",256,256,0),("empty_kernel",256,256,0)],[k,empty]))
    open("mb1_empty.s","w").write(gen([("empty_kernel",256,256,0)]*6,[empty]))
```

```python
from mb1 import kern, gen
def pro(nwaves):
    b = """
s_load_dwordx2 s[4:5], s[0:1], 24
s_load_dwordx2 s[6:7], s[0:1], 16
s_waitcnt lgkmcnt(0)
s_mov_b32 s8, s4
s_mov_b32 s9, s5
s_mov_b32 s10, 0x10000000
s_mov_b32 s11, 0x20000
v_and_b32 v1, 255, v0
v_lshlrev_b32 v1, 4, v1
v_and_b32 v2, 63, v0
v_lshlrev_b32 v2, 4, v2
v_lshrrev_b32 v3, 6, v0
s_nop 0
v_readfirstlane_b32 s31, v3
s_lshl_b32 s13, s31, 13
s_add_u32 s13, s13, 0x8000
s_mov_b32 s12, 0
"""
    for i in range(32):
        b += f"s_mov_b32 m0, {i*1024}\ns_nop 0\nbuffer_load_dwordx4 v2, s[8:11], s12 offen lds\ns_add_u32 s12, s12, 1024\n"
    for i in range(8):
        b += f"buffer_load_dwordx4 v[{8+4*i}:{11+4*i}], v1, s[8:11], s12 offen\ns_add_u32 s12, s12, 4096\n"
    b += "s_waitcnt vmcnt(0)\ns_barrier\n"
    for i in range(96): b += f"v_accvgpr_write_b32 a{i}, 0\n"
    for i in range(32): b += f"v_mov_b32 v{40+i}, v{8+i}\n"
    return b
def dma(i):
    return [f"s_add_u32 m0, s13, {(i%8)*1024}", "s_and_b32 s12, s12, 0xfffff", "buffer_load_dwordx4 v1, s[8:11], s12 offen lds", "s_add_u32 s12, s12, 4096"]
def loop(lbl, iters, nexp, nadd, ncvt, nds, ndma, dma_pos=None, order="eacd", lgk=4, nm=32, waitevery=1, barrier=True, vmw=None):
    b = f"s_mov_b32 s15, {iters}\ns_mov_b32 s12, 0\n.p2align 6\n{lbl}:\n"
    fill = [dict(e=[],a=[],c=[],d=[],m=[]) for _ in range(nm)]
    def spread(t, lst, off=0):
        n = len(lst)
        for j, it in enumerate(lst): fill[((j*nm)//n+off)%nm][t].append(it)
    if nexp: spread('e', [f"v_exp_f32 v{72+i%16}, v{40+i%32}" for i in range(nexp)])
    if nadd: spread('a', [f"v_add_f32 v{88+i%4}, v{72+((i*nexp)//nadd+8)%16}, v{88+i%4}" for i in range(nadd)])
    if ncvt: spread('c', [f"v_cvt_pk_bf16_f32 v{92+i%4}, v{72+(2*i+8)%16}, v{72+(2*i+9)%16}" for i in range(ncvt)])
    if nds: spread('d', [f"ds_read_b128 v[{96+4*(i%8)}:{99+4*(i%8)}], v2 offset:{(i%32)*1024}" for i in range(nds)])
    if ndma:
        for j in range(ndma):
            fill[(j*nm//ndma + (dma_pos or 0))%nm]['m'] += dma(j)
    for i in range(nm):
        if nds and i % waitevery == 0: b += f"s_waitcnt lgkmcnt({lgk})\n"
        ar = 96+4*((i+8-lgk-waitevery)%8) if nds else 8+4*(i%8)
        acc = 16*((i//8)%6)
        b += f"v_mfma_f32_32x32x16_bf16 a[{acc}:{acc+15}], v[{ar}:{ar+3}], v[{8+4*(i%8)}:{11+4*(i%8)}], a[{acc}:{acc+15}]\n"
        for t in order+"m":
            for f in fill[i][t]: b += f + "\n"
    if ndma: b += f"s_waitcnt vmcnt({vmw if vmw is not None else ndma})\n"
    if barrier: b += "s_barrier\n"
    b += f"s_sub_u32 s15, s15, 1\ns_cmp_lg_u32 s15, 0\ns_cbranch_scc1 {lbl}\n"
    return b
def loader(lbl, iters, ndma):
    b = f"s_mov_b32 s15, {iters}\ns_mov_b32 s12, 0\n.p2align 6\n{lbl}:\n"
    for j in range(ndma): b += "\n".join(dma(j)) + "\n"
    b += f"s_waitcnt vmcnt({ndma})\ns_barrier\ns_sub_u32 s15, s15, 1\ns_cmp_lg_u32 s15, 0\ns_cbranch_scc1 {lbl}\n"
    return b
T0 = "s_memtime s[20:21]\ns_memrealtime s[26:27]\ns_waitcnt lgkmcnt(0)\n"
EPI = """END:
s_memtime s[22:23]
s_memrealtime s[28:29]
s_waitcnt lgkmcnt(0) vmcnt(0)
s_sub_u32 s22, s22, s20
s_sub_u32 s28, s28, s26
v_mov_b32 v3, s22
v_mov_b32 v5, s28
s_mov_b32 s16, s6
s_mov_b32 s17, s7
s_mov_b32 s18, 256
s_mov_b32 s19, 0x20000
s_lshr_b32 s3, s2, 3
s_lshl_b32 s3, s3, 3
v_mov_b32 v4, s3
v_cmp_eq_u32 vcc, 0, v0
s_and_saveexec_b64 s[24:25], vcc
s_cbranch_execz DONE
buffer_store_dword v3, v4, s[16:19], 0 offen
buffer_store_dword v5, v4, s[16:19], 0 offen offset:4
DONE:
"""
def kern256(name, body):
    t, d = kern(name, body, vgpr=256)
    return t, d.replace("accum_offset 256", "accum_offset 128")
IT = 60
out = {}
mix = (32,32,16,32)
out["single_nodma"] = (256, pro(4)+T0+loop("L0", IT, *mix, 0)+EPI, 1)
out["single_nodma_dfirst"] = (256, pro(4)+T0+loop("L0", IT, *mix, 0, order="deac")+EPI, 1)
out["single_nodma_w2"] = (256, pro(4)+T0+loop("L0", IT, *mix, 0, order="deac", waitevery=2)+EPI, 1)
out["single_nodma_w4"] = (256, pro(4)+T0+loop("L0", IT, *mix, 0, order="deac", waitevery=4, lgk=3)+EPI, 1)
out["single_dma"] = (256, pro(4)+T0+loop("L0", IT, *mix, 8, order="deac", waitevery=2)+EPI, 1)
b = pro(4)+T0
for w in range(4):
    b += f"s_cmp_eq_u32 s31, {w}\ns_cbranch_scc1 W{w}\n"
for w in range(4):
    b += f"W{w}:\n" + loop(f"L{w}", IT, *mix, 8, dma_pos=w, order="deac", waitevery=2) + "s_branch END\n"
out["single_dma_stag"] = (256, b+EPI, 1)
b = pro(8)+T0+"s_cmp_ge_u32 s31, 4\ns_cbranch_scc1 LD\n" + loop("L0", IT, *mix, 0, order="deac", waitevery=2) + "s_branch END\nLD:\n" + loader("L1", IT, 8)
out["loader"] = (512, b+EPI, 1)
b = pro(8)+T0+"s_cmp_ge_u32 s31, 4\ns_cbranch_scc1 LD\ns_setprio 1\n" + loop("L0", IT, *mix, 0, order="deac", waitevery=2) + "s_branch END\nLD:\n" + loader("L1", IT, 8)
out["loader_prio"] = (512, b+EPI, 1)
out["dual"] = (512, pro(8)+T0+loop("L0", IT//2, *mix, 8, order="deac", waitevery=2)+EPI, 1)
out["dual_max"] = (512, pro(8)+T0+loop("L0", IT//2, 32,48,16,32, 8, order="deac", waitevery=2)+EPI, 1)
out["dual_nobar"] = (512, pro(8)+T0+loop("L0", IT//2, *mix, 8, order="deac", waitevery=2, barrier=False)+EPI, 1)
for nm,(bl,body,_) in out.items():
    k = kern256("m_kernel", body)
    open(f"mb5_{nm}.s","w").write(gen([("m_kernel",256,bl,98304+4096)],[k]))
```

```python
from mb1 import kern, gen
from mb5 import pro, T0, EPI
import glob, os
for f in glob.glob("mb5_*.s")+glob.glob("mb1[0-9]_*.s"): os.remove(f)
def loop(order, acck, srck, nds, iters=60):
    b = ""
    for i in range(32): b += f"v_accvgpr_write_b32 a{i}, v{8+i}\nv_accvgpr_write_b32 a{32+i}, v{8+(i+13)%32}\nv_mov_b32 v{40+i}, v{8+(i+13)%32}\n"
    for i in range(128): b += f"v_mov_b32 v{128+i}, 0\nv_accvgpr_write_b32 a{128+i}, 0\n"
    b += T0 + f"s_mov_b32 s15, {iters}\n.p2align 6\nL0:\n"
    A = lambda i: (f"v[{8+4*i}:{11+4*i}]" if srck == "v" else f"a[{4*i}:{4*i+3}]")
    B = lambda i: (f"v[{40+4*i}:{43+4*i}]" if srck == "v" else f"a[{32+4*i}:{35+4*i}]")
    for n, e in enumerate(order):
        i, j = e[:2]
        acc = 128 + 4*((e[2] if len(e) > 2 else i*8+j) % 32)
        b += f"v_mfma_f32_16x16x32_bf16 {acck}[{acc}:{acc+3}], {A(i)}, {B(j)}, {acck}[{acc}:{acc+3}]\n"
        if nds and n % (64//nds) == 0:
            m = n//(64//nds)
            b += f"ds_read_b128 v[{80+4*(m%8)}:{83+4*(m%8)}], v2 offset:{(m%32)*1024}\n"
    b += f"s_waitcnt lgkmcnt(0)\ns_barrier\ns_sub_u32 s15, s15, 1\ns_cmp_lg_u32 s15, 0\ns_cbranch_scc1 L0\n"
    return b
O = {
 "none": [((n) % 8, (n + n//8) % 8) for n in range(64)],
 "b8": [(i, j) for j in range(8) for i in range(8)],
 "b8snake": [(i if j % 2 == 0 else 7-i, j) for j in range(8) for i in range(8)],
 "a8": [(i, j) for i in range(8) for j in range(8)],
 "b4": [(i0*4+i, j) for i0 in range(2) for j in range(8) for i in range(4)],
 "b2snake": [(i0*2+(i if j % 2 == 0 else 1-i), j) for i0 in range(4) for j in range(8) for i in range(2)],
}
O["chain4"] = [((4*(n//4 % 2) + n % 4), (4*((n//8) % 2) + n % 4), n//4) for n in range(64)]
O["chain2"] = [((2*(n//2 % 4) + n % 2), (2*((n//8) % 4) + n % 2), n//2) for n in range(64)]
o = []
for j in range(4):
    for rep in range(2):
        for i in range(4):
            p = [(2*i, 2*j), (2*i+1, 2*j+1)]
            if i % 2: p = p[::-1]
            o += [(a, b, (j*2+rep)*4+i) for a, b in p]
O["chain2share"] = o
o = []
for n in range(16):
    ia, jb = (n % 2), (n//2 + (n % 2 and 0)) % 2
    ia = ((n+1)//2) % 2; jb = (n//2) % 2
    p = [(4*ia+t, 4*jb+t) for t in range(4)]
    if n % 2: p = p[::-1]
    o += [(a, b, n) for a, b in p]
O["chain4share"] = o
O["chain8"] = [(n % 8, (n + n//8) % 8, n//8) for n in range(64)]
O["chain64"] = [(n % 8, (n + n//8) % 8, 0) for n in range(64)]
O["b4snake"] = [(i0*4+(i if j % 2 == 0 else 3-i), j) for i0 in range(2) for j in range(8) for i in range(4)]
O["a2snake"] = [(j, i) for i, j in O["b2snake"]]
def k512(body):
    t, d = kern("m_kernel", body, vgpr=512)
    return t, d
for nm, acck, srck in (("b4snake","a","v"),("chain4","a","v"),("chain2share","a","v"),("chain4share","a","v"),("chain8","a","v"),("chain64","a","v"),("chain2share","v","a"),("chain2share","v","v"),("chain2share","a","a")):
    open(f"mb19_{nm}_acc{acck}_src{srck}.s","w").write(gen([("m_kernel",256,256,98304+4096)],[k512(pro(4) + loop(O[nm], acck, srck, 32) + EPI)]))
```
